```python
import torch

def _softmax(x, axis=-1):
    return torch.softmax(x, dim=axis)
def _gelu(x):
    return torch.nn.functional.gelu(x, approximate="tanh")
def _silu(x):
    return torch.nn.functional.silu(x)
def _sigmoid(x):
    return torch.sigmoid(x)
def _layernorm(x, axis=-1, eps=1e-5):
    m = x.mean(dim=axis, keepdim=True)
    v = x.var(dim=axis, keepdim=True, unbiased=False)
    return (x - m) / torch.sqrt(v + eps)
def _scatter_add(tgt, idx, src, axis=0):
    return tgt.clone().index_add_(axis, idx, src)
def _segment_sum(src, seg, n):
    out = torch.zeros((n,) + src.shape[1:], dtype=src.dtype)
    return out.index_add_(0, seg, src)
def _pad(x, pw):
    flat = tuple(v for pair in reversed(pw) for v in pair)
    return torch.nn.functional.pad(x, flat)

kernel_name = 'gated_mix__spectral_gfnet__glu_gated_reglu__prompt'

def setup_inputs():

    _w = (lambda a: (lambda t: t.to(torch.bfloat16) if t.is_floating_point() else t)(torch.as_tensor(a)))
    def _A_setup():
        B, S, D = 1, 2048, 576
        Df = D // 2 + 1
        return {
            "x": _w((lambda *s: torch.randn(*s, dtype=torch.bfloat16) * 0.05)(B, S, D)),
            "w_r": _w((lambda *s: torch.randn(*s, dtype=torch.bfloat16) * 0.05)(S, Df) * 0.02),
            "w_i": _w((lambda *s: torch.randn(*s, dtype=torch.bfloat16) * 0.05)(S, Df) * 0.02),
        }
    _A_in = _A_setup()

    def _B_setup():
        B, S, D, F = 1, 2048, 576, 4608
        return {
            "x": _w((lambda *s: torch.randn(*s, dtype=torch.bfloat16) * 0.05)(B, S, D)),
            "W_gate": _w((lambda *s: torch.randn(*s, dtype=torch.bfloat16) * 0.2)(D, F) * (2.0 / D) ** 0.5),
            "W_up": _w((lambda *s: torch.randn(*s, dtype=torch.bfloat16) * 0.2)(D, F) * (2.0 / D) ** 0.5),
            "W_down": _w((lambda *s: torch.randn(*s, dtype=torch.bfloat16) * 0.2)(F, D) * (1.0 / F) ** 0.5),
        }
    _B_in = _B_setup()

    return {
        "A_x": _A_in["x"],
        "A_w_r": _A_in["w_r"],
        "A_w_i": _A_in["w_i"],
        "B_x": _B_in["x"],
        "B_W_gate": _B_in["W_gate"],
        "B_W_up": _B_in["W_up"],
        "B_W_down": _B_in["W_down"],
        "gate_w": _w((lambda *s: torch.randn(*s, dtype=torch.bfloat16) * 0.05)(576) * 16.0),
    }

def reference(A_x, A_w_r, A_w_i, B_x, B_W_gate, B_W_up, B_W_down, gate_w):
    def _A_ref(x, w_r, w_i):
        B, S, D = x.shape
        X = (lambda x, axes=(-2,-1): torch.fft.rfft2(x.float(), dim=axes))(x, axes=(-2, -1))
        W = w_r + 1j * w_i
        X = X * W
        y = (lambda x, s, axes=(-2,-1): torch.fft.irfft2(x, s=s, dim=axes).to(torch.bfloat16))(X, (S, D), axes=(-2, -1))
        return y

    def _B_ref(x, W_gate, W_up, W_down):
        gate = torch.einsum("bsd,df->bsf", x, W_gate)
        up = torch.einsum("bsd,df->bsf", x, W_up)
        gate = gate * (lambda x, dt: x.to(dt))(gate > 0, gate.dtype)
        h = gate * up
        return torch.einsum("bsf,fd->bsd", h, W_down)

    x = A_x
    g = _sigmoid((x * gate_w).sum(-1, keepdims=True))
    a = _A_ref(x, A_w_r, A_w_i)
    b = _B_ref(x, B_W_gate, B_W_up, B_W_down)
    return g * a + (1 - g) * b
```

```python
import re
REG = re.compile(r'^(-|abs\(|\|)?([vas])(\d+)\)?\|?$|^(-|abs\(|\|)?([vas])\[(\d+):(\d+)\]\)?\|?$')
TRANS = ('v_exp_f32', 'v_log_f32', 'v_rcp_f32', 'v_rsq_f32', 'v_sqrt_f32', 'v_sin_f32', 'v_cos_f32', 'v_rcp_iflag_f32')

def regs_of(op):
    op = op.strip()
    if op == 'vcc': return {('s', 106), ('s', 107)}
    if op == 'exec': return {('s', 126), ('s', 127)}
    if op == 'm0': return {('s', 124)}
    m = REG.match(op)
    if not m: return set()
    if m.group(2): return {(m.group(2), int(m.group(3)))}
    return {(m.group(5), i) for i in range(int(m.group(6)), int(m.group(7)) + 1)}

def split_ops(s):
    out, depth, cur = [], 0, ''
    for ch in s:
        if ch in '[(': depth += 1
        if ch in '])': depth -= 1
        if ch == ',' and depth == 0: out.append(cur.strip()); cur = ''
        else: cur += ch
    if cur.strip(): out.append(cur.strip())
    return out

class Ins:
    __slots__ = ('text', 'mn', 'kind', 'wr', 'rd', 'a', 'b', 'c', 'passes', 'ws', 'dpp', 'store_data', 'wide')
    def __init__(s, text):
        s.text = text
        t = text.split(';')[0].strip()
        parts = t.split(None, 1)
        s.mn = mn = parts[0]
        rest = parts[1] if len(parts) > 1 else ''
        ops = split_ops(rest)
        if ops:
            last = ops[-1].split()
            mods = last[1:]
            ops[-1] = last[0]
        else: mods = []
        s.wr, s.rd = set(), set(); s.a = s.b = s.c = set(); s.passes = 0; s.ws = 1
        s.dpp = 'dpp' in mn or any(m.startswith(('quad_perm', 'row_')) for m in mods)
        s.store_data = set(); s.wide = False
        R = [regs_of(o) for o in ops]
        if mn == 's_nop': s.kind = 'nop'; s.ws = int(ops[0], 0) + 1
        elif mn.startswith('v_mfma'):
            s.kind = 'mfma'; s.wr = R[0]; s.a, s.b, s.c = R[1], R[2], R[3]; s.rd = R[1] | R[2] | R[3]
            s.passes = 8 if '32x32x16' in mn else (4 if '16x16x32' in mn else 16)
        elif mn.startswith('v_'):
            s.kind = 'valu'
            if mn.startswith('v_cmp'):
                s.wr = R[0]; s.rd = set().union(*R[1:])
                if mn.startswith('v_cmpx'): s.wr = s.wr | regs_of('exec')
            elif mn.startswith('v_permlane') and 'swap' in mn:
                s.wr = R[0] | R[1]; s.rd = R[0] | R[1]
            elif mn.startswith(('v_add_co', 'v_sub_co', 'v_addc_co', 'v_subb_co', 'v_subrev_co')):
                s.wr = R[0] | R[1]; s.rd = set().union(*R[2:])
            elif mn == 'v_nop': pass
            else:
                s.wr = R[0]; s.rd = set().union(*R[1:]) if len(R) > 1 else set()
                if mn.startswith(('v_fmac', 'v_dot2c', 'v_pk_fmac')) or s.dpp or 'd16' in mn: s.rd = s.rd | R[0]
                if mn.startswith('v_cndmask') and len(ops) == 3: s.rd = s.rd | regs_of('vcc')
        elif mn.startswith(('buffer_', 'global_')):
            s.kind = 'vmem'
            lds = 'lds' in mods or 'lds' in mn
            if mn.startswith(('buffer_wbl2', 'buffer_inv')): pass
            elif 'load' in mn:
                if lds: s.rd = set().union(*R) | regs_of('m0'); s.kind = 'vmem_lds'
                else:
                    s.wr = R[0]; s.rd = set().union(*R[1:])
                    if 'd16' in mn: s.rd |= R[0]
            elif 'store' in mn:
                s.rd = set().union(*R)
                s.store_data = R[0] if mn.startswith('buffer_') else R[1]
                s.wide = 'x4' in mn or 'x3' in mn
            else:
                s.rd = set().union(*R)
                if 'sc0' in mods: s.wr = R[0]
        elif mn.startswith('ds_'):
            s.kind = 'ds'
            if 'read' in mn or 'bpermute' in mn or 'swizzle' in mn: s.wr = R[0]; s.rd = set().union(*R[1:])
            else: s.rd = set().union(*R)
        elif mn.startswith('s_'):
            s.kind = 'salu'
            if mn.startswith(('s_cmp', 's_bitcmp', 's_cbranch', 's_branch', 's_waitcnt', 's_barrier', 's_endpgm', 's_setprio', 's_sleep')):
                s.rd = set().union(*R) if R else set()
            else:
                s.wr = R[0] if R else set(); s.rd = set().union(*R[1:]) if len(R) > 1 else set()
                if 'saveexec' in mn: s.wr = s.wr | regs_of('exec')
        else:
            raise ValueError('unknown instr ' + text)

def need(prod, cons):
    n = 0
    pv = {r for r in prod.wr if r[0] in 'va'}
    ps = {r for r in prod.wr if r[0] == 's'}
    if prod.kind == 'valu':
        if cons.kind == 'mfma' and pv & cons.rd: n = max(n, 2)
        if cons.kind == 'mfma' and regs_of('exec') & prod.wr: n = max(n, 4)
        if cons.kind in ('vmem', 'vmem_lds') and ps & cons.rd: n = max(n, 5)
        if cons.kind == 'valu':
            if ps & cons.rd: n = max(n, 4 if cons.mn.startswith(('v_readlane', 'v_writelane')) else 2)
            if cons.dpp and pv & cons.rd: n = max(n, 2)
            if cons.dpp and regs_of('exec') & prod.wr: n = max(n, 5)
            if cons.mn.startswith(('v_readlane', 'v_readfirstlane')) and pv & cons.rd: n = max(n, 1)
            if cons.mn.startswith('v_permlane') and pv & cons.rd: n = max(n, 2)
            if prod.mn.startswith(TRANS) and not cons.mn.startswith(TRANS) and pv & (cons.rd | cons.wr): n = max(n, 1)
        if prod.mn.startswith(TRANS) and cons.kind in ('vmem', 'ds', 'mfma') and pv & cons.rd: n = max(n, 2 if cons.kind == 'mfma' else 1)
        if cons.kind == 'salu' and ps & cons.rd: n = max(n, 1)
    if prod.kind == 'salu':
        if regs_of('m0') & prod.wr and cons.kind == 'vmem_lds': n = max(n, 1)
    if prod.kind == 'mfma':
        P = prod.passes
        t_ab = {2: 5, 4: 8, 8: 12, 16: 20}[P]; t_c = {2: 4, 4: 6, 8: 10, 16: 18}[P]; t_war = {2: 1, 4: 3, 8: 7, 16: 15}[P]
        if cons.kind == 'mfma':
            if prod.wr & (cons.a | cons.b): n = max(n, t_ab)
            if prod.wr & cons.c and not (prod.wr == cons.c and prod.passes == cons.passes): n = max(n, t_c)
            if prod.wr & cons.wr and not (prod.wr & cons.c): n = max(n, t_c)
        elif cons.kind in ('valu', 'vmem', 'vmem_lds', 'ds'):
            if prod.wr & (cons.rd | cons.wr): n = max(n, t_ab)
            if cons.kind == 'valu' and prod.c & cons.wr: n = max(n, t_war)
    if prod.kind == 'vmem' and prod.wide and prod.store_data & cons.wr:
        n = max(n, 2 if cons.kind == 'valu' else 1)
    return n

class Asm:
    def __init__(s):
        s.lines = []
        s.win = []
        s.nnop = 0
    def raw(s, t): s.lines.append(('x', t))
    def label(s, name, keep=True):
        s.lines.append(('l', name))
    def __call__(s, text):
        for t in text.split('\n'):
            t = t.strip()
            if not t or t.startswith(';'):
                if t: s.raw('    ' + t)
                continue
            if t.endswith(':'): s.label(t[:-1]); continue
            s.emit(Ins(t))
    def emit(s, ins):
        pad = s.pad_needed(ins)
        while pad > 0:
            k = min(pad, 16)
            nop = Ins(f's_nop {k-1}')
            s.lines.append(('i', nop)); s.win.append(nop); pad -= k; s.nnop += 1
        s.lines.append(('i', ins)); s.win.append(ins)
        s.win = s.win[-24:]
    def pad_needed(s, ins):
        dist = 0; pad = 0
        for p in reversed(s.win):
            nd = need(p, ins)
            if nd > dist: pad = max(pad, nd - dist)
            dist += p.ws
            if dist >= 20: break
        return pad
    def flush(s, n=None):
        s.win = []
    def text(s):
        out = []
        for k, o in s.lines:
            if k == 'i': out.append('    ' + o.text)
            elif k == 'l': out.append(o + ':')
            else: out.append(o)
        return '\n'.join(out) + '\n'
    def check_cfg(s):
        ins = []; labels = {}
        for k, o in s.lines:
            if k == 'i': ins.append(o)
            elif k == 'l': labels[o] = len(ins)
        bad = []
        for i, o in enumerate(ins):
            if o.mn.startswith(('s_cbranch', 's_branch')):
                tgt = o.text.split()[1]
                if tgt not in labels: continue
                pre = ins[max(0, i - 24):i + 1]
                j = labels[tgt]
                d0 = 0
                for c in ins[j:j + 24]:
                    dist = d0
                    for p in reversed(pre):
                        if need(p, c) > dist: bad.append((p.text, c.text, tgt, need(p, c), dist))
                        dist += p.ws
                        if dist >= 20: break
                    d0 += c.ws
                    if d0 >= 20 or c.mn in ('s_branch', 's_endpgm'): break
        return bad

def kdesc(name, vgpr, accum, sgpr=100):
    return f'''.section .rodata,"a"
.p2align 6
.amdhsa_kernel {name}
  .amdhsa_next_free_vgpr {vgpr}
  .amdhsa_next_free_sgpr {sgpr}
  .amdhsa_accum_offset {accum}
  .amdhsa_group_segment_fixed_size 0
  .amdhsa_kernarg_size 88
  .amdhsa_user_sgpr_count 2
  .amdhsa_user_sgpr_kernarg_segment_ptr 1
  .amdhsa_system_sgpr_workgroup_id_x 1
  .amdhsa_float_denorm_mode_32 3
.end_amdhsa_kernel
.text
'''
```

```python
import sys, math, struct
from asmdsl import Asm, kdesc

def f2u(x): return struct.unpack('<I', struct.pack('<f', x))[0]

WS_H   = 0
WS_X1T = WS_H + 288 * 65536
WS_Y1T = WS_X1T + 576 * 4096
WS_WT  = WS_Y1T + 576 * 4096
WS_GT  = WS_WT + 37 * 65536
WS_G   = WS_GT + 18 * 36 * 1024
WS_P   = WS_G + 8192
WS_END = WS_P + 8 * 64 * 18 * 2048
WS_STAMP = 0x8000000
SC = 'sc0 sc1'
OPT = set()

def srd(A, d, base, size):
    A(f's_mov_b32 s{d}, s{base}\ns_mov_b32 s{d+1}, s{base+1}\ns_mov_b32 s{d+2}, {size}\ns_mov_b32 s{d+3}, 0x20000')

def header(A, name, nwg):
    A.raw(f'.globl {name}\n.p2align 8\n.type {name},@function\n{name}:')
    A.flush()
    A(f's_cmp_ge_u32 s2, {nwg}\ns_cbranch_scc1 L_{name}_end')
    A('s_load_dwordx16 s[64:79], s[0:1], 0\ns_load_dwordx4 s[80:83], s[0:1], 64\ns_load_dwordx2 s[84:85], s[0:1], 80')

def stamp(A, idx, prof):
    if prof:
        A(f's_memrealtime s[{86+2*idx}:{87+2*idx}]')
        if idx in (1, 2): A(f's_memtime s[{50+2*idx}:{51+2*idx}]')

def stamp_out(A, kidx, n, prof, wave_s='s30'):
    if not prof: return
    A('s_waitcnt lgkmcnt(0)')
    A(f's_sub_u32 s{86+2*n}, s54, s52\ns_mov_b32 s{87+2*n}, 0')
    n += 1
    A(f's_lshl_b32 s3, s2, 3\ns_add_u32 s3, s3, {wave_s}\ns_lshl_b32 s3, s3, 6\ns_add_u32 s3, s3, {WS_STAMP + kidx*0x40000}')
    A('s_mov_b64 exec, 1\nv_mov_b32 v2, 0')
    for i in range(n):
        A(f'v_mov_b32 v4, s{86+2*i}\nv_mov_b32 v5, s{87+2*i}\nbuffer_store_dwordx2 v[4:5], v2, s[16:19], s3 offen offset:{8*i}\ns_nop 1')

MF = 'v_mfma_f32_32x32x16_bf16'
def vr(b, n=4): return f'v[{b}:{b+n-1}]'

K1_WSLOT = 18560
K1_XR = 4 * K1_WSLOT
K1_LDS = K1_XR + 65536
def gen_k1(A, prof):
    name = 'k1_kernel'
    header(A, name, 256)
    stamp(A, 0, prof)
    A('''v_and_b32 v1, 63, v0
v_lshrrev_b32 v2, 6, v0
s_and_b32 s31, s2, 7
s_lshr_b32 s32, s2, 3
v_readfirstlane_b32 s30, v2
s_and_b32 s33, s32, 3
s_lshl_b32 s31, s31, 2
s_add_u32 s31, s31, s33
s_lshr_b32 s32, s32, 2''')
    A('s_and_b32 s33, s30, 3\ns_lshr_b32 s34, s30, 2')
    A('''s_lshr_b32 s35, s30, 1
s_lshl_b32 s36, s32, 2
s_add_u32 s35, s35, s36
s_and_b32 s36, s30, 1
s_lshl_b32 s36, s36, 5
s_add_u32 s35, s35, s36
s_mul_i32 s35, s35, 1152
v_lshrrev_b32 v3, 3, v1
s_mov_b32 s36, 73728
v_mul_lo_u32 v3, v3, s36
v_add_u32 v3, s35, v3
v_and_b32 v4, 7, v1
v_lshrrev_b32 v5, 4, v1''')
    for i in range(4):
        A(f'v_add_u32 v6, {4*i}, v5\nv_and_b32 v6, 7, v6\nv_xor_b32 v6, v6, v4\nv_lshl_add_u32 v{10+i}, v6, 4, v3')
        if i: A(f'v_add_u32 v{10+i}, {i*(8*73728-1024)}, v{10+i}')
    A(f's_mul_i32 s35, s33, {8*9216}\ns_mul_i32 s36, s31, 288\ns_add_u32 s35, s35, s36')
    A(f's_mov_b32 s36, {(1<<32)//288+1}\ns_mov_b32 s37, {9216-288}')
    for i, (sh, add) in enumerate([(4, 0), (4, 1024), (2, 2048)]):
        A(f'v_lshlrev_b32 v3, {sh}, v1')
        if add: A(f'v_add_u32 v3, {add}, v3')
        A(f'v_mul_hi_u32 v4, v3, s36\nv_mul_lo_u32 v4, v4, s37\nv_lshlrev_b32 v5, {sh}, v1\nv_add3_u32 v{7+i}, v4, v5, s35')
    A('s_waitcnt lgkmcnt(0)')
    srd(A, 8, 64, 2048 * 1152)
    A('s_cmp_eq_u32 s34, 0\ns_cselect_b32 s12, s72, s74\ns_cselect_b32 s13, s73, s75\ns_mov_b32 s14, %d\ns_mov_b32 s15, 0x20000' % (576 * 9216))
    srd(A, 16, 84, 0x10000000 if prof else WS_END)
    A(f's_mul_i32 s38, s34, 9344\ns_mul_i32 s35, s33, 2304\ns_add_u32 s38, s38, s35\ns_lshl_b32 s39, s30, 12\ns_add_u32 s39, s39, {K1_XR}')
    def dma_x(slot, soff):
        L = [f's_add_u32 m0, s39, {slot*32768}']
        L += [f'buffer_load_dwordx4 v{10+i}, s[8:11], {soff} offen offset:{1024*i} lds' for i in range(4)]
        return L
    def dma_w(slot, soff):
        return [f's_add_u32 m0, s38, {slot*K1_WSLOT}',
                f'buffer_load_dwordx4 v7, s[12:15], {soff} offen lds',
                f'buffer_load_dwordx4 v8, s[12:15], {soff} offen offset:1024 lds',
                f'buffer_load_dword v9, s[12:15], {soff} offen offset:2048 lds']
    A('s_mov_b32 s40, 0')
    A('\n'.join(dma_x(0, 's40')))
    for st in range(3):
        A(f's_mov_b32 s41, {st*32*9216}')
        A('\n'.join(dma_w(st, 's41')))
    A(f's_mov_b32 s41, {3*32*9216}\ns_mov_b32 s40, 128\ns_mov_b32 s42, 0')
    A(f'''v_and_b32 v14, 31, v1
v_lshrrev_b32 v15, 5, v1
s_lshl_b32 s35, s33, 13
s_add_u32 s35, s35, {K1_XR}
v_lshlrev_b32 v16, 7, v14
v_add_u32 v16, s35, v16
v_lshrrev_b32 v17, 1, v14
v_and_b32 v17, 7, v17
v_xor_b32 v17, v17, v15
v_lshlrev_b32 v17, 4, v17''')
    for kk in range(4):
        A(f'v_xor_b32 v18, {kk*32}, v17\nv_add_u32 v{2+kk}, v16, v18')
    A('''v_bfe_u32 v16, v1, 4, 1
v_mul_u32_u24 v16, 9344, v16
v_bfe_u32 v17, v1, 2, 2
v_lshl_add_u32 v17, v15, 3, v17
v_mul_u32_u24 v17, 288, v17
v_and_b32 v18, 3, v1
v_lshlrev_b32 v18, 3, v18
v_add3_u32 v6, v16, v17, v18
s_mul_i32 s35, s34, 160
v_add_u32 v6, s35, v6''')
    A(f'''s_lshl_b32 s35, s31, 5
v_add_u32 v16, s35, v14
v_subrev_u32 v17, 288, v16
v_cmp_gt_u32 vcc, 289, v16
v_mov_b32 v18, 0x3e800000
v_cndmask_b32 v16, v17, v16, vcc
v_cndmask_b32 v22, v18, 0, vcc
v_cvt_f32_u32 v21, v16
v_mul_f32 v21, {hex(f2u(1.0/576))}, v21
s_mov_b32 s36, {(1<<32)//576+1}
s_movk_i32 s37, 576
v_lshlrev_b32 v17, 4, v16
v_mul_hi_u32 v18, v17, s36
v_mul_lo_u32 v18, v18, s37
v_sub_u32 v20, v17, v18
v_lshlrev_b32 v17, 3, v16
v_mul_lo_u32 v17, v17, v15
v_mul_hi_u32 v18, v17, s36
v_mul_lo_u32 v18, v18, s37
v_sub_u32 v19, v17, v18''')
    SA = [32, 60]; SB = [52, 80]; ACC = 96
    def fd_gen(dst):
        L = [f'v_cvt_f32_u32 v23, v19', f'v_add_u32 v19, v19, v20', f'v_fmamk_f32 v23, v23, {hex(f2u(1.0/576))}, v22',
             f'v_subrev_u32 v31, 576, v19', f'v_min_u32 v19, v19, v31']
        for i in range(1, 8):
            L.append(f'v_fmamk_f32 v{23+i}, v21, {hex(f2u(float(i)))}, v23')
        for i in range(8):
            L.append(f'v_cos_f32 v{23+i}, v{23+i}')
        for i in range(4):
            L.append(f'v_cvt_pk_bf16_f32 v{dst+i}, v{23+2*i}, v{24+2*i}')
        return L
    for r in range(ACC, 256): A(f'v_mov_b32 v{r}, 0')
    def reads(st, wslot, kk2, xslot, kk, nt):
        L = []
        def xr(p): return f'ds_read_b128 {vr(SB[st]+4*p)}, v{2+kk} offset:{xslot*32768 + p*4096}'
        def wr(t, h): return f'ds_read_b64_tr_b16 {vr(SA[st]+4*t+2*h, 2)}, v6 offset:{wslot*K1_WSLOT + kk2*4608 + h*1152 + t*32}'
        L += [xr(0), wr(0, 0), wr(0, 1), xr(1)]
        for t in range(1, nt): L += [wr(t, 0), wr(t, 1)]
        return L
    def mfmas(st, var):
        L = []
        nt = 5 if var == 'm0' else 4
        for t in range(nt):
            for p in range(2):
                a = ACC + 16 * (2 * t + p)
                L.append(f'{MF} {vr(a,16)}, {vr(SA[st]+4*t)}, {vr(SB[st]+4*p)}, {vr(a,16)}')
        if var == 'dft':
            for p in range(2):
                a = ACC + 16 * (8 + p)
                L.append(f'{MF} {vr(a,16)}, {vr(SB[st]+4*p)}, {vr(SA[st]+16)}, {vr(a,16)}')
        if 'mf16' in OPT:
            L2 = []
            for m in L:
                import re as _re
                a0 = int(_re.search(r'v\[(\d+):', m).group(1))
                ops = m.split(', ')
                q0 = a0 + 8 * st
                aa = ops[1] if ops[1] not in (vr(SB[st]), vr(SB[st]+4)) else ops[2]
                L2.append(f'v_mfma_f32_16x16x32_bf16 {vr(q0)}, {aa}, {vr(SB[st])}, {vr(q0)}\nv_mfma_f32_16x16x32_bf16 {vr(q0+4)}, {aa}, {vr(SB[st]+4)}, {vr(q0+4)}')
            L = L2
        return L
    def interleave(mf, rd, other, start_other=1):
        if 'noread' in OPT: rd = []
        if 'nodma' in OPT: other = [o for o in other if 'buffer_load' not in o]
        if 'nomfma' in OPT: mf = ['s_nop 0' for m in mf]
        out = []; n = len(mf); rd = list(rd); other = list(other)
        slots = n - start_other
        for i, m in enumerate(mf):
            out.append(m)
            out += rd[:2]; rd = rd[2:]
            if i >= start_other and other:
                k = -(-len(other) // (n - i))
                out += other[:k]; other = other[k:]
        assert not rd and not other
        return out
    A('s_cmp_lt_u32 s31, 18\ns_cbranch_scc1 L_k1_nochore')
    srd(A, 20, 66, 2048 * 578); srd(A, 24, 68, 2048 * 578)
    A('s_sub_u32 s44, s31, 18\ns_lshl_b32 s44, s44, 3\ns_add_u32 s44, s44, s32\ns_lshl_b32 s44, s44, 3\ns_add_u32 s44, s44, s30\ns_mul_i32 s44, s44, 3')
    A('v_lshlrev_b32 v14, 1, v1\nv_lshrrev_b32 v17, 3, v1\nv_lshlrev_b32 v17, 16, v17\nv_and_b32 v18, 7, v1\nv_lshl_add_u32 v17, v18, 4, v17')
    for i in range(3):
        A(f's_add_u32 s45, s44, {i}\ns_lshr_b32 s46, s45, 9\ns_and_b32 s47, s45, 511')
        A('s_and_b32 s48, s47, 31\ns_bfe_u32 s49, s47, 0x30005\ns_lshl_b32 s49, s49, 8\ns_add_u32 s48, s48, s49\ns_lshr_b32 s49, s47, 8\ns_lshl_b32 s49, s49, 5\ns_add_u32 s48, s48, s49')
        A('s_mul_i32 s48, s48, 578\ns_lshl_b32 s49, s46, 7\ns_add_u32 s48, s48, s49')
        A(f's_cmp_lt_u32 s45, 2560\ns_cselect_b32 s48, s48, 0x80000000')
        for e in range(4):
            A(f'buffer_load_ushort v{32+4*i+e}, v14, s[20:23], s48 offen\nbuffer_load_ushort v{48+4*i+e}, v14, s[24:27], s48 offen')
            if e < 3: A(f's_add_u32 s48, s48, {64*578}')
        A(f's_lshl_b32 s49, s46, 6\nv_add_u32 v15, s49, v1\nv_cmp_gt_u32 vcc, 289, v15\ns_lshl_b32 s49, s46, 19\ns_lshl_b32 s47, s47, 7\ns_add_u32 s49, s49, s47\nv_add_u32 v15, s49, v17\nv_mov_b32 v16, 0x80000000\nv_cndmask_b32 v{44+i}, v16, v15, vcc')
    A(f's_waitcnt vmcnt(0)\ns_mov_b32 s35, {WS_WT}')
    for i in range(12):
        A(f'v_lshl_or_b32 v{32+i}, v{48+i}, 16, v{32+i}')
    for i in range(3):
        A(f'buffer_store_dwordx4 {vr(32+4*i)}, v{44+i}, s[16:19], s35 offen {SC}')
    A('s_branch L_k1_go\nL_k1_nochore:\ns_waitcnt vmcnt(6)\nL_k1_go:\ns_barrier')
    stamp(A, 1, prof)
    A('\n'.join(dma_x(1, 's40') + dma_w(3, 's41')))
    A(f's_mov_b32 s40, 256\ns_add_u32 s41, s41, {32*9216}')
    A(f's_cmp_eq_u32 s34, 0\ns_cbranch_scc1 L_k1_m0\ns_cmp_lt_u32 s31, 18\ns_cbranch_scc1 L_k1_dft\ns_branch L_k1_m1')
    for var in ['m0', 'dft', 'm1']:
        nt = 5 if var == 'm0' else 4
        A(f'L_k1_{var}:'); A.flush()
        A('\n'.join(reads(0, 0, 0, 0, 0, nt)))
        if var == 'dft': A('\n'.join(fd_gen(SA[0] + 16)))
        A.raw('.p2align 4')
        A(f'L_k1_{var}_loop:')
        for sg_ in range(4):
            n_ = (sg_ + 1) & 3
            A('s_waitcnt lgkmcnt(0)')
            oth = fd_gen(SA[1] + 16) if var == 'dft' else []
            A('\n'.join(interleave(mfmas(0, var), reads(1, sg_, 1, sg_ >> 1, 2 * (sg_ & 1) + 1, nt), oth, 0)))
            A(f's_waitcnt vmcnt({6 if sg_ & 1 else 10}) lgkmcnt(0)')
            if 'nobar' not in OPT: A('s_barrier')
            oth = []
            if sg_ & 1:
                oth += dma_x(0 if sg_ == 1 else 1, 's40')
            oth += dma_w(sg_, 's41')
            if sg_ & 1:
                oth += ['s_add_u32 s40, s40, 128', 's_cmp_ge_u32 s40, 1152', 's_cselect_b32 s40, 0x80000000, s40']
            oth += [f's_add_u32 s41, s41, {32*9216}']
            if var == 'dft':
                g = fd_gen(SA[0] + 16)
                m = []
                while oth or g:
                    m += g[:2]; g = g[2:]; m += oth[:1]; oth = oth[1:]
                oth = m
            A('\n'.join(interleave(mfmas(1, var), reads(0, n_, 0, n_ >> 1, 2 * (n_ & 1), nt), oth, 0 if var == 'dft' else 1)))
            if sg_ == 1:
                A(f's_add_u32 s42, s42, 1\ns_cmp_eq_u32 s42, 5\ns_cbranch_scc1 L_k1_{var}_done')
        A(f's_branch L_k1_{var}_loop')
        A(f'L_k1_{var}_done:')
        A('s_waitcnt lgkmcnt(0)')
        stamp(A, 2, prof)
        A(f'''s_lshl_b32 s35, s32, 3
s_lshl_b32 s36, s33, 1
s_add_u32 s35, s35, s36
s_lshl_b32 s35, s35, 10
v_lshlrev_b32 v2, 4, v1
v_add_u32 v2, s35, v2
s_mul_i32 s36, s31, 9
s_mul_i32 s37, s34, 5
s_add_u32 s36, s36, s37
s_lshl_b32 s36, s36, 16''')
        if WS_H: A(f's_add_u32 s36, s36, {WS_H}')
        tmpsets = [32, 48]
        cnt = 0
        for t in range(nt):
            for p in range(2):
                a = ACC + 16 * (2 * t + p)
                d = 32 + 4 * (cnt % 8); cnt += 1
                for j in range(8): A(f'v_max_f32 v{a+j}, 0, v{a+j}')
                for j in range(0, 8, 2): A(f'v_pk_mul_f32 {vr(a+j,2)}, {vr(a+j,2)}, {vr(a+8+j,2)}')
                for j in range(4): A(f'v_cvt_pk_bf16_f32 v{d+j}, v{a+2*j}, v{a+2*j+1}')
                A(f'buffer_store_dwordx4 {vr(d)}, v2, s[16:19], s36 offen offset:{p*1024} {SC}')
            A('s_add_u32 s36, s36, 65536')
        if var == 'dft':
            A(f'''v_and_b32 v14, 31, v1
v_lshrrev_b32 v15, 5, v1
v_lshlrev_b32 v14, 12, v14
v_lshl_add_u32 v14, v15, 5, v14
s_lshl_b32 s35, s31, 17
s_lshl_b32 s36, s32, 2
s_add_u32 s36, s36, s33
s_lshl_b32 s36, s36, 7
s_add_u32 s35, s35, s36
s_add_u32 s35, s35, {WS_X1T}''')
            for p in range(2):
                a = ACC + 16 * (8 + p)
                for j in range(8): A(f'v_cvt_pk_bf16_f32 v{64+8*p+j}, v{a+2*j}, v{a+2*j+1}')
                for q in range(2):
                    A(f'buffer_store_dwordx4 {vr(64+8*p+4*q)}, v14, s[16:19], s35 offen offset:{p*64+q*16} {SC}')
        A('s_branch L_k1_fin')
    A('L_k1_fin:')
    if prof:
        stamp(A, 3, prof)
        A('s_waitcnt vmcnt(0)')
        stamp(A, 4, prof)
        stamp_out(A, 0, 5, prof)
    A(f'L_{name}_end:\ns_endpgm')
    A.raw(kdesc(name, 256, 256))


K2_HR = 4 * 12288
K2_LDS = K2_HR + 65536
def gen_k2(A, prof):
    name = 'k2_kernel'
    header(A, name, 256)
    stamp(A, 0, prof)
    A("""v_and_b32 v1, 63, v0
v_lshrrev_b32 v2, 6, v0
s_and_b32 s31, s2, 7
s_lshr_b32 s32, s2, 3
v_readfirstlane_b32 s30, v2""")
    A('s_waitcnt lgkmcnt(0)')
    srd(A, 16, 84, 0x10000000 if prof else WS_END)
    A('s_cmp_ge_u32 s2, 192\ns_cbranch_scc1 L_k2_side')
    A('s_mul_i32 s43, s32, 43\ns_lshr_b32 s43, s43, 7\ns_mul_i32 s44, s43, 3\ns_sub_u32 s44, s32, s44')
    A('s_and_b32 s33, s30, 3\ns_lshr_b32 s34, s30, 2')
    srd(A, 12, 76, 4608 * 1152)
    A('s_lshl_b32 s35, s43, 3\ns_lshl_b32 s36, s33, 1\ns_add_u32 s35, s35, s36\ns_lshl_b32 s45, s35, 10\nv_lshlrev_b32 v7, 4, v1\nv_add_u32 v7, s45, v7')
    A(f's_mul_i32 s35, s31, {576*1152}\ns_mul_i32 s36, s33, {8*1152}\ns_add_u32 s35, s35, s36\ns_mul_i32 s36, s44, 384\ns_add_u32 s35, s35, s36')
    A(f's_mov_b32 s36, {(1<<32)//24+1}')
    for i in range(3):
        A(f"""v_add_u32 v3, {64*i}, v1
v_mul_hi_u32 v4, v3, s36
v_mul_u32_u24 v5, 24, v4
v_sub_u32 v5, v3, v5
v_bfe_u32 v6, v4, 1, 1
v_lshlrev_b32 v6, 2, v6
v_xor_b32 v5, v5, v6
v_mul_u32_u24 v4, 1152, v4
v_lshl_add_u32 v4, v5, 4, v4
v_add_u32 v{8+i}, s35, v4""")
        if i: A(f'v_subrev_u32 v{8+i}, {1024*i}, v{8+i}')
    A(f's_mul_i32 s38, s33, 3072\ns_lshl_b32 s39, s33, 11\ns_add_u32 s39, s39, {K2_HR}')
    A(f's_mul_i32 s40, s31, {36*65536}')
    if WS_H: A(f's_add_u32 s40, s40, {WS_H}')
    A('s_mov_b32 s41, 0\ns_mov_b32 s42, 0\ns_mov_b32 s46, 0')
    def dma(dh, slot):
        if dh == 0:
            L = [f's_add_u32 m0, s39, {slot*16384}',
                 'buffer_load_dwordx4 v7, s[16:19], s40 offen lds', 'buffer_load_dwordx4 v7, s[16:19], s40 offen offset:1024 lds',
                 's_add_u32 s40, s40, 65536', f's_add_u32 m0, s39, {slot*16384+8192}',
                 'buffer_load_dwordx4 v7, s[16:19], s40 offen lds', 'buffer_load_dwordx4 v7, s[16:19], s40 offen offset:1024 lds',
                 's_add_u32 s40, s40, 65536', 's_add_u32 s46, s46, 1', 's_cmp_ge_u32 s46, 18', 's_cselect_b32 s40, 0x80000000, s40']
        else:
            L = [f's_add_u32 m0, s38, {slot*12288}'] + [f'buffer_load_dwordx4 v{8+i}, s[12:15], s41 offen offset:{1024*i} lds' for i in range(3)]
            L += [f's_add_u32 s41, s41, {32*1152}', 's_add_u32 s46, s46, 1', 's_cmp_ge_u32 s46, 18', 's_cselect_b32 s41, 0x80000000, s41']
        return L
    def addr_setup():
        A(f"""v_lshlrev_b32 v2, 4, v1
v_add_u32 v2, s39, v2
v_lshrrev_b32 v11, 5, v1
v_bfe_u32 v12, v1, 2, 2
v_lshl_add_u32 v12, v11, 2, v12
v_mul_u32_u24 v12, 384, v12
v_bfe_u32 v13, v1, 4, 1
v_lshl_add_u32 v12, v13, 5, v12
v_and_b32 v13, 3, v1
v_lshl_add_u32 v12, v13, 3, v12
v_bfe_u32 v13, v1, 3, 1
v_lshlrev_b32 v13, 6, v13
v_add_u32 v3, v12, v13
v_sub_u32 v4, v12, v13
v_add_u32 v4, 64, v4""")
    SA = [16, 36]; SB = [28, 48]; ACC = 64
    def reads(dh, st, slot, ks):
        def xr(p): return f'ds_read_b128 {vr(SB[st]+4*p)}, v2 offset:{slot*16384 + ks*8192 + p*1024}'
        def wr(t, h):
            G = 3 * dh + t
            return f'ds_read_b64_tr_b16 {vr(SA[st]+4*t+2*h, 2)}, v{3 + (G & 1)} offset:{slot*12288 + ks*16*384 + h*8*384 + (G - (G & 1))*64}'
        return [xr(0), wr(0, 0), wr(0, 1), xr(1), wr(1, 0), wr(1, 1), wr(2, 0), wr(2, 1)]
    def mfmas(st):
        return [f'{MF} {vr(ACC+16*(2*t+p),16)}, {vr(SA[st]+4*t)}, {vr(SB[st]+4*p)}, {vr(ACC+16*(2*t+p),16)}' for t in range(3) for p in range(2)]
    def interleave(mf, rd, other, start_other=1):
        out = []; n = len(mf); rd = list(rd); other = list(other)
        for i, m in enumerate(mf):
            out.append(m)
            out += rd[:2]; rd = rd[2:]
            if i >= start_other and other:
                k = -(-len(other) // (n - i))
                out += other[:k]; other = other[k:]
        assert not rd and not other
        return out
    A('s_cmp_eq_u32 s34, 0\ns_cbranch_scc0 L_k2_d1')
    for dh in range(2):
        ng = 4 if dh == 0 else 3
        A(f'L_k2_d{dh}:'); A.flush()
        for st in range(3): A('\n'.join(dma(dh, st)))
        addr_setup()
        for r in range(ACC, ACC + 96): A(f'v_mov_b32 v{r}, 0')
        A(f's_waitcnt vmcnt({2*ng})\ns_barrier')
        stamp(A, 1, prof)
        A('\n'.join(dma(dh, 3)))
        A('\n'.join(reads(dh, 0, 0, 0)))
        A.raw('.p2align 4')
        A(f'L_k2_d{dh}_loop:')
        for sg_ in range(4):
            n_ = (sg_ + 1) & 3
            A('s_waitcnt lgkmcnt(0)')
            A('\n'.join(interleave(mfmas(0), reads(dh, 1, sg_, 1), [])))
            A(f's_waitcnt vmcnt({2*ng}) lgkmcnt(0)\ns_barrier')
            A('\n'.join(interleave(mfmas(1), reads(dh, 0, n_, 0), dma(dh, sg_), 1)))
            if sg_ == 1:
                A(f's_add_u32 s42, s42, 1\ns_cmp_eq_u32 s42, 5\ns_cbranch_scc1 L_k2_done')
        A(f's_branch L_k2_d{dh}_loop')
    A('L_k2_done:')
    A('s_waitcnt lgkmcnt(0)')
    stamp(A, 2, prof)
    A(f"""s_mul_i32 s35, s31, {64*18*2048}
s_lshl_b32 s36, s43, 3
s_lshl_b32 s37, s33, 1
s_add_u32 s36, s36, s37
s_mul_i32 s36, s36, 36864
s_add_u32 s35, s35, s36
s_mul_i32 s36, s44, 6
s_mul_i32 s37, s34, 3
s_add_u32 s36, s36, s37
s_lshl_b32 s36, s36, 11
s_add_u32 s35, s35, s36
s_add_u32 s35, s35, {WS_P}
s_add_u32 s36, s35, 36864
v_lshlrev_b32 v2, 4, v1""")
    cnt = 0
    for t in range(3):
        for p in range(2):
            a = ACC + 16 * (2 * t + p)
            for half in range(2):
                d = 16 + 4 * (cnt % 8); cnt += 1
                for j in range(4): A(f'v_cvt_pk_bf16_f32 v{d+j}, v{a+8*half+2*j}, v{a+8*half+2*j+1}')
                A(f'buffer_store_dwordx4 {vr(d)}, v2, s[16:19], s{35+p} offen offset:{half*1024} {SC}')
        A('s_add_u32 s35, s35, 2048\ns_add_u32 s36, s36, 2048')
    A('s_branch L_k2_fin')

    A('L_k2_side:'); A.flush()
    stamp(A, 1, prof)
    A('s_sub_u32 s32, s2, 192')
    A('v_and_b32 v2, 31, v1\nv_lshrrev_b32 v4, 5, v1\nv_cvt_f32_u32 v3, v2\nv_cvt_f32_u32 v5, v4')
    A('s_cmp_eq_u32 s30, 5\ns_cbranch_scc1 L_k2_g\ns_cmp_gt_u32 s30, 5\ns_cbranch_scc1 L_k2_gt')
    A('s_lshl_b32 s33, s32, 2\ns_add_u32 s33, s33, s30\ns_add_u32 s34, s32, 256\ns_cmp_eq_u32 s30, 4\ns_cselect_b32 s33, s34, s33')
    A('s_cmp_ge_u32 s33, 289\ns_cbranch_scc1 L_k2_fin2')
    A('s_lshl_b32 s34, s33, 12\ns_add_u32 s35, s33, 288\ns_lshl_b32 s35, s35, 12')
    A(f's_add_u32 s36, s34, {WS_X1T}\ns_add_u32 s37, s35, {WS_X1T}\ns_add_u32 s38, s34, {WS_Y1T}\ns_add_u32 s39, s35, {WS_Y1T}')
    A('s_cmp_eq_u32 s33, 0\ns_cselect_b32 s37, 0x80000000, s37\ns_cselect_b32 s39, 0x80000000, s39\ns_cmp_eq_u32 s33, 288\ns_cselect_b32 s37, 0x80000000, s37\ns_cselect_b32 s39, 0x80000000, s39')
    A('v_lshlrev_b32 v6, 7, v2\nv_lshl_add_u32 v6, v4, 5, v6')
    ZR, ZI, WTR, CC, SS, NS, CO, SO, NO, AC, T = 16, 32, 48, 80, 88, 96, 104, 112, 120, 128, 192
    for p in range(2):
        for q in range(2):
            A(f'buffer_load_dwordx4 {vr(ZR+8*p+4*q)}, v6, s[16:19], s36 offen offset:{p*64+q*16}')
            A(f'buffer_load_dwordx4 {vr(ZI+8*p+4*q)}, v6, s[16:19], s37 offen offset:{p*64+q*16}')
    A(f's_lshr_b32 s40, s33, 3\ns_lshl_b32 s40, s40, 16\ns_and_b32 s41, s33, 7\ns_lshl_b32 s41, s41, 4\ns_add_u32 s40, s40, s41\ns_add_u32 s40, s40, {WS_WT}\nv_lshlrev_b32 v7, 7, v1')
    for i in range(8):
        A(f'buffer_load_dwordx4 {vr(WTR+4*i)}, v7, s[16:19], s40 offen\ns_add_u32 s40, s40, 8192')
    def cr(r): return (r & 3) + 8 * (r >> 2)
    def gen_const(dc, ds, dn, alpha, mul, add):
        A(f'v_mul_f32 v8, {hex(f2u(4.0*mul))}, v5')
        if add: A(f'v_add_f32 v8, {float(add)}, v8')
        A(f'v_mul_f32 v8, v8, v{alpha}')
        for q in range(2):
            for j in range(8): A(f'v_fmamk_f32 v{T+j}, v{alpha}, {hex(f2u(float(mul*(16*q+cr(j)))))}, v8')
            for j in range(8): A(f'v_cos_f32 v{T+8+j}, v{T+j}')
            for j in range(8): A(f'v_sin_f32 v{T+j}, v{T+j}')
            for j in range(4): A(f'v_cvt_pk_bf16_f32 v{dc+4*q+j}, v{T+8+2*j}, v{T+9+2*j}')
            for j in range(4): A(f'v_cvt_pk_bf16_f32 v{ds+4*q+j}, v{T+2*j}, v{T+1+2*j}')
            for j in range(4): A(f'v_xor_b32 v{dn+4*q+j}, 0x80008000, v{ds+4*q+j}')
    A(f'v_mul_f32 v9, {hex(f2u(1/32))}, v3')
    gen_const(CC, SS, NS, 9, 1, 0)
    A(f'v_mul_f32 v9, {hex(f2u(1/64))}, v3')
    gen_const(CO, SO, NO, 9, 2, 1)
    def mm4(terms, data_is_a):
        seq = []
        for step in range(4):
            for ai, tm in enumerate(terms):
                dat, con = tm[step >> 1]
                q = step & 1
                x, y = (dat + 4 * q, con + 4 * q) if data_is_a else (con + 4 * q, dat + 4 * q)
                acc = vr(AC + 16 * ai, 16)
                seq.append(f'{MF} {acc}, {vr(x)}, {vr(y)}, {acc if step else 0}')
        A('\n'.join(seq))
    A('s_waitcnt vmcnt(8)')
    mm4([[(ZR, CC), (ZI, SS)], [(ZI, CC), (ZR, NS)], [(ZR + 8, CO), (ZI + 8, SO)], [(ZI + 8, CO), (ZR + 8, NO)]], True)
    A(f'v_fma_f32 v9, v3, 2.0, 1.0\nv_mul_f32 v9, {hex(f2u(1/64))}, v9')
    gen_const(CO, SO, NO, 9, 1, 0)
    for b in range(2):
        A(f'v_mul_f32 v9, {hex(f2u(1/2048))}, v3')
        if b: A(f'v_add_f32 v9, {hex(f2u(32/2048))}, v9')
        A('v_mul_f32 v8, 4.0, v5\nv_mul_f32 v8, v8, v9')
        op = 'v_add_f32' if b == 0 else 'v_sub_f32'
        for r0 in range(0, 16, 4):
            for e in range(4): A(f'v_fmamk_f32 v{T+e}, v9, {hex(f2u(float(cr(r0+e))))}, v8')
            for e in range(4): A(f'v_cos_f32 v{T+4+e}, v{T+e}')
            for e in range(4): A(f'v_sin_f32 v{T+e}, v{T+e}')
            for e in range(4):
                r = r0 + e
                A(f'{op} v{T+8+e}, v{AC+r}, v{AC+32+r}\n{op} v{T+12+e}, v{AC+16+r}, v{AC+48+r}')
            for e in range(4):
                A(f'v_mul_f32 v{T+16+e}, v{T+8+e}, v{T+4+e}\nv_mul_f32 v{T+20+e}, v{T+12+e}, v{T+4+e}')
            for e in range(4):
                A(f'v_fmac_f32 v{T+16+e}, v{T+12+e}, v{T+e}\nv_fma_f32 v{T+20+e}, -v{T+8+e}, v{T+e}, v{T+20+e}')
            for e in range(2):
                A(f'v_cvt_pk_bf16_f32 v{ZR+8*b+r0//2+e}, v{T+16+2*e}, v{T+17+2*e}\nv_cvt_pk_bf16_f32 v{ZI+8*b+r0//2+e}, v{T+20+2*e}, v{T+21+2*e}')
    mm4([[(ZR, CC), (ZI, SS)], [(ZI, CC), (ZR, NS)], [(ZR + 8, CC), (ZI + 8, SS)], [(ZI + 8, CC), (ZR + 8, NS)]], False)
    A('s_waitcnt vmcnt(0)\ns_mov_b32 s41, 0xffff0000')
    for b in range(2):
        for r0 in range(0, 16, 4):
            for e in range(4):
                w = WTR + 16 * b + r0 + e
                A(f'v_lshlrev_b32 v{T+e}, 16, v{w}\nv_and_b32 v{T+4+e}, s41, v{w}')
            for e in range(4):
                zr, zi = AC + 32 * b + r0 + e, AC + 32 * b + 16 + r0 + e
                A(f'v_mul_f32 v{T+8+e}, v{zr}, v{T+e}\nv_mul_f32 v{T+12+e}, v{zr}, v{T+4+e}')
            for e in range(4):
                zr, zi = AC + 32 * b + r0 + e, AC + 32 * b + 16 + r0 + e
                A(f'v_fma_f32 v{T+8+e}, -v{zi}, v{T+4+e}, v{T+8+e}\nv_fmac_f32 v{T+12+e}, v{zi}, v{T+e}')
            for e in range(2):
                A(f'v_cvt_pk_bf16_f32 v{ZR+8*b+r0//2+e}, v{T+8+2*e}, v{T+9+2*e}\nv_cvt_pk_bf16_f32 v{ZI+8*b+r0//2+e}, v{T+12+2*e}, v{T+13+2*e}')
    mm4([[(ZR, CC), (ZI, NS)], [(ZI, CC), (ZR, SS)], [(ZR + 8, CC), (ZI + 8, NS)], [(ZI + 8, CC), (ZR + 8, SS)]], True)
    A(f'v_mul_f32 v9, {hex(f2u(1/2048))}, v3\nv_mul_f32 v8, 4.0, v5\nv_mul_f32 v8, v8, v9')
    for r0 in range(0, 16, 2):
        for b in range(2):
            for e in range(2): A(f'v_fmamk_f32 v{T+2*b+e}, v9, {hex(f2u(float(cr(r0+e)+32*b)))}, v8')
        for k in range(4): A(f'v_cos_f32 v{T+4+k}, v{T+k}')
        for k in range(4): A(f'v_sin_f32 v{T+k}, v{T+k}')
        for b in range(2):
            for e in range(2):
                k = 2 * b + e; pr, pi = AC + 32 * b + r0 + e, AC + 32 * b + 16 + r0 + e
                A(f'v_mul_f32 v{T+8+k}, v{pr}, v{T+4+k}\nv_mul_f32 v{T+12+k}, v{pi}, v{T+4+k}')
        for b in range(2):
            for e in range(2):
                k = 2 * b + e; pr, pi = AC + 32 * b + r0 + e, AC + 32 * b + 16 + r0 + e
                A(f'v_fma_f32 v{T+8+k}, -v{pi}, v{T+k}, v{T+8+k}\nv_fmac_f32 v{T+12+k}, v{pr}, v{T+k}')
        for e in range(2):
            A(f'v_add_f32 v{T+16+e}, v{T+8+e}, v{T+10+e}\nv_sub_f32 v{T+18+e}, v{T+8+e}, v{T+10+e}\nv_add_f32 v{T+20+e}, v{T+12+e}, v{T+14+e}\nv_sub_f32 v{T+22+e}, v{T+12+e}, v{T+14+e}')
        A(f'v_cvt_pk_bf16_f32 v{ZR+r0//2}, v{T+16}, v{T+17}\nv_cvt_pk_bf16_f32 v{ZR+8+r0//2}, v{T+18}, v{T+19}\nv_cvt_pk_bf16_f32 v{ZI+r0//2}, v{T+20}, v{T+21}\nv_cvt_pk_bf16_f32 v{ZI+8+r0//2}, v{T+22}, v{T+23}')
    mm4([[(ZR, CC), (ZI, NS)], [(ZI, CC), (ZR, SS)], [(ZR + 8, CO), (ZI + 8, NO)], [(ZI + 8, CO), (ZR + 8, SO)]], False)
    for p in range(2):
        for part in range(2):
            a = AC + 32 * p + 16 * part
            d = WTR + 16 * p + 8 * part
            for j in range(8): A(f'v_cvt_pk_bf16_f32 v{d+j}, v{a+2*j}, v{a+2*j+1}')
            for q in range(2):
                A(f'buffer_store_dwordx4 {vr(d+4*q)}, v6, s[16:19], s{38+part} offen offset:{p*64+q*16} {SC}')
    A('s_branch L_k2_fin2')

    A('L_k2_g:'); A.flush()
    srd(A, 8, 64, 2048 * 1152); srd(A, 12, 78, 1152)
    A('v_and_b32 v6, 7, v1\nv_lshlrev_b32 v6, 4, v6')
    for i in range(9): A(f'buffer_load_dwordx4 {vr(16+4*i)}, v6, s[12:15], 0 offen offset:{128*i}')
    A('s_lshr_b32 s33, s32, 1\ns_and_b32 s34, s32, 1\ns_lshl_b32 s34, s34, 5\ns_add_u32 s33, s33, s34\ns_mul_i32 s33, s33, 1152')
    A('v_lshrrev_b32 v7, 3, v1\ns_mov_b32 s34, 73728\nv_mul_lo_u32 v8, v7, s34\nv_add_u32 v8, v8, v6\ns_mov_b32 s41, 0xffff0000')
    A('s_waitcnt vmcnt(0)')
    for i in range(36): A(f'v_lshlrev_b32 v{160+2*i}, 16, v{16+i}\nv_and_b32 v{161+2*i}, s41, v{16+i}')
    for ps in range(4):
        for i in range(9): A(f'buffer_load_dwordx4 {vr(16+36*ps+4*i)}, v8, s[8:11], s33 offen offset:{128*i}')
        A(f's_add_u32 s33, s33, {8*73728}')
    A(f's_lshl_b32 s35, s32, 7\ns_add_u32 s35, s35, {WS_G}\nv_lshlrev_b32 v9, 2, v7')
    for ps in range(4):
        A(f's_waitcnt vmcnt({27-9*ps+ps})\nv_mov_b32 v10, 0\nv_mov_b32 v11, 0')
        for i0 in range(0, 36, 4):
            for e in range(4):
                x = 16 + 36 * ps + i0 + e
                A(f'v_lshlrev_b32 v{232+2*e}, 16, v{x}\nv_and_b32 v{233+2*e}, s41, v{x}')
            for e in range(4): A(f'v_pk_mul_f32 {vr(232+2*e,2)}, {vr(232+2*e,2)}, {vr(160+2*(i0+e),2)}')
            for e in range(4): A(f'v_cvt_pk_bf16_f32 v{240+e}, v{232+2*e}, v{233+2*e}')
            for e in range(4): A(f'v_lshlrev_b32 v{232+2*e}, 16, v{240+e}\nv_and_b32 v{233+2*e}, s41, v{240+e}')
            for e in range(4): A(f'v_pk_add_f32 v[10:11], v[10:11], {vr(232+2*e,2)}')
        A('v_add_f32 v10, v10, v11')
        for perm in ['quad_perm:[1,0,3,2]', 'quad_perm:[2,3,0,1]', 'row_half_mirror']:
            A(f'v_add_f32_dpp v10, v10, v10 {perm} row_mask:0xf bank_mask:0xf')
        A(f"""v_cvt_pk_bf16_f32 v10, v10, v10
v_lshlrev_b32 v10, 16, v10
v_mul_f32 v10, {hex(f2u(-1.4426950408889634))}, v10
v_exp_f32 v10, v10
v_add_f32 v10, 1.0, v10
v_rcp_f32 v10, v10
v_cvt_pk_bf16_f32 v10, v10, v10
v_lshlrev_b32 v12, 16, v10
buffer_store_dword v12, v9, s[16:19], s35 offen offset:{32*ps}""")
    A('s_branch L_k2_fin2')

    A('L_k2_gt:'); A.flush()
    A('s_lshl_b32 s33, s32, 1\ns_add_u32 s33, s33, s30\ns_sub_u32 s33, s33, 6')
    A(f's_mov_b32 s36, {(1<<32)//576+1}\ns_movk_i32 s37, 576\ns_movk_i32 s46, 288\nv_lshlrev_b32 v6, 4, v1')
    A('L_k2_gt_loop:')
    A(f's_mul_i32 s34, s33, 1821\ns_lshr_b32 s34, s34, 16\ns_mul_i32 s35, s34, 36\ns_sub_u32 s35, s33, s35')
    A('s_lshl_b32 s34, s34, 5\nv_add_u32 v7, s34, v2\ns_lshl_b32 s35, s35, 4\nv_lshl_add_u32 v8, v4, 3, s35')
    for j in range(8):
        A(f"""v_add_u32 v9, {j}, v8
v_subrev_u32 v10, 288, v9
v_cmp_gt_u32 vcc, 289, v9
v_mov_b32 v11, 0x3e800000
v_cndmask_b32 v10, v10, v9, vcc
v_cndmask_b32 v11, v11, 0, vcc
v_mul_lo_u32 v12, v10, v7
v_mul_hi_u32 v13, v12, s36
v_mul_lo_u32 v13, v13, s37
v_sub_u32 v12, v12, v13
v_cvt_f32_u32 v12, v12
v_fmamk_f32 v12, v12, {hex(f2u(1.0/576))}, v11
v_cos_f32 v{16+j}, v12
v_cmp_eq_u32 vcc, 0, v9
v_cmp_eq_u32 s[44:45], s37, v9
v_add_f32 v12, v{16+j}, v{16+j}""".replace('s[44:45], s37, v9', 's[44:45], s46, v9'))
        A(f's_or_b64 vcc, vcc, s[44:45]\nv_cndmask_b32 v{16+j}, v12, v{16+j}, vcc')
    for j in range(4): A(f'v_cvt_pk_bf16_f32 v{24+j}, v{16+2*j}, v{17+2*j}')
    A(f's_lshl_b32 s34, s33, 10\ns_add_u32 s34, s34, {WS_GT}')
    A(f'buffer_store_dwordx4 v[24:27], v6, s[16:19], s34 offen {SC}')
    A('s_add_u32 s33, s33, 128\ns_cmp_lt_u32 s33, 648\ns_cbranch_scc1 L_k2_gt_loop')
    A('L_k2_fin2:')
    stamp(A, 2, prof)
    A('L_k2_fin:')
    if prof:
        stamp(A, 3, prof)
        A('s_waitcnt vmcnt(0)')
        stamp(A, 4, prof)
        stamp_out(A, 1, 5, prof)
    A(f'L_{name}_end:\ns_endpgm')
    A.raw(kdesc(name, 256, 256))

K3_LDS = 73728
def gen_k3(A, prof):
    name = 'k3_kernel'
    header(A, name, 192)
    stamp(A, 0, prof)
    A("""v_and_b32 v1, 63, v0
v_lshrrev_b32 v2, 6, v0
s_and_b32 s31, s2, 31
s_lshr_b32 s32, s2, 5
v_readfirstlane_b32 s30, v2""")
    A("""v_lshrrev_b32 v3, 3, v1
v_lshlrev_b32 v3, 12, v3
v_bfe_u32 v4, v1, 4, 1
v_lshlrev_b32 v4, 2, v4
v_and_b32 v5, 7, v1
v_xor_b32 v4, v4, v5
v_lshl_add_u32 v7, v4, 4, v3""")
    A(f's_mul_i32 s33, s30, {144*4096}\ns_lshl_b32 s34, s31, 7\ns_add_u32 s33, s33, s34\ns_add_u32 s33, s33, {WS_Y1T}\ns_mul_i32 s34, s30, 18432')
    A('s_waitcnt lgkmcnt(0)')
    srd(A, 16, 84, 0x10000000 if prof else WS_END)
    srd(A, 20, 80, 2048 * 1152)
    for i in range(18):
        A(f's_add_u32 m0, s34, {1024*i}\nbuffer_load_dwordx4 v7, s[16:19], s33 offen lds')
        if i < 17: A(f's_add_u32 s33, s33, 32768')
    A('s_cmp_eq_u32 s30, 3\ns_cbranch_scc0 L_k3_comp')
    A('s_waitcnt vmcnt(0)\ns_barrier')
    stamp(A, 1, prof); stamp(A, 2, prof)
    A('s_branch L_k3_fin')
    A('L_k3_comp:'); A.flush()
    A('s_mul_i32 s35, s32, 3\ns_add_u32 s35, s35, s30')
    A(f's_mul_i32 s36, s35, 36864\ns_add_u32 s36, s36, {WS_GT}\nv_lshlrev_b32 v8, 4, v1')
    for ks in range(36):
        A(f'buffer_load_dwordx4 a[{4*ks}:{4*ks+3}], v8, s[16:19], s36 offen offset:{1024*(ks&3)}')
        if ks & 3 == 3: A('s_add_u32 s36, s36, 4096')
    A(f'v_and_b32 v2, 31, v1\nv_lshrrev_b32 v4, 5, v1\nv_lshlrev_b32 v9, 2, v2\ns_lshl_b32 s37, s31, 8\ns_add_u32 s37, s37, {WS_G}')
    A('buffer_load_dword v10, v9, s[16:19], s37 offen\nbuffer_load_dword v11, v9, s[16:19], s37 offen offset:128')
    A("""v_bfe_u32 v5, v1, 2, 2
v_lshl_add_u32 v5, v4, 3, v5
v_lshlrev_b32 v5, 7, v5
v_and_b32 v6, 1, v1
v_lshl_add_u32 v5, v6, 5, v5
v_bfe_u32 v6, v1, 1, 1
v_lshl_add_u32 v5, v6, 3, v5
v_bfe_u32 v6, v1, 4, 1
v_lshl_add_u32 v5, v6, 4, v5
v_bfe_u32 v6, v1, 3, 1
v_lshlrev_b32 v6, 6, v6
v_add_u32 v12, v5, v6
v_xor_b32 v13, 64, v12
v_add_u32 v14, 36864, v12
v_add_u32 v15, 36864, v13""")
    A(f's_mul_i32 s38, s31, 73728\ns_lshl_b32 s39, s35, 11\ns_add_u32 s38, s38, s39\ns_add_u32 s38, s38, {WS_P}')
    ACC = 16; YF = 48; PP = 80
    def pload(p):
        A(f's_add_u32 s39, s38, {36864*p}')
        for q in range(8):
            for half in range(2):
                A(f'buffer_load_dwordx4 {vr(PP+64*p+8*q+4*half)}, v8, s[16:19], s39 offen offset:{1024*half}')
            if q < 7: A(f's_add_u32 s39, s39, {64*18*2048}')
    def yread(ks):
        for p in range(2):
            for h in range(2):
                A(f'ds_read_b64_tr_b16 {vr(YF+8*(ks&3)+4*p+2*h,2)}, v{12+p+(2 if ks>=18 else 0)} offset:{(ks%18)*2048+h*512}')
    A('s_waitcnt vmcnt(38)\ns_barrier')
    stamp(A, 1, prof)
    pload(0)
    for ks in range(3): yread(ks)
    for ks in range(36):
        if ks == 24: pload(1)
        if ks + 3 < 36: yread(ks + 3)
        w = min(3, 35 - ks) * 4
        vm = {0: 42, 12: 30, 24: 34}.get(ks)
        A(f's_waitcnt lgkmcnt({w})' + (f' vmcnt({vm})' if vm is not None else ''))
        for p in range(2):
            A(f'{MF} {vr(ACC+16*p,16)}, a[{4*ks}:{4*ks+3}], {vr(YF+8*(ks&3)+4*p)}, {vr(ACC+16*p,16) if ks else 0}')
    stamp(A, 2, prof)
    A('s_mov_b32 s40, 0x3f80\ns_mov_b32 s41, 0x3f800000\ns_mov_b32 s42, 0xffff0000')
    A('s_mov_b32 s43, 73728\nv_mul_lo_u32 v3, v2, s43\nv_lshl_add_u32 v3, v4, 3, v3\ns_mul_i32 s43, s31, 1152\ns_lshl_b32 s44, s35, 6\ns_add_u32 s43, s43, s44')
    B = 48
    for p in range(2):
        A(f's_waitcnt vmcnt({16 if p == 0 else 4})')
        for q in range(8):
            for dw in range(8):
                src = PP + 64 * p + 8 * q + dw
                for lh in range(2):
                    r = B + 2 * dw + lh
                    A(f'v_dot2_f32_bf16 v{r}, v{src}, s{40+lh}, {"v%d" % r if q else 0}')
        g = 10 + p
        A(f'v_sub_f32 v5, 1.0, v{g}\nv_cvt_pk_bf16_f32 v5, v5, v5\nv_lshlrev_b32 v5, 16, v5')
        for r in range(16): A(f'v_mul_f32 v{ACC+16*p+r}, {hex(f2u(1.0/(2048*576)))}, v{ACC+16*p+r}')
        def rnd(base, tmp):
            for j in range(8): A(f'v_cvt_pk_bf16_f32 v{tmp+j}, v{base+2*j}, v{base+2*j+1}')
            for j in range(8): A(f'v_lshlrev_b32 v{base+2*j}, 16, v{tmp+j}\nv_and_b32 v{base+2*j+1}, s42, v{tmp+j}')
        rnd(ACC + 16 * p, 64); rnd(B, 64)
        for r in range(16): A(f'v_mul_f32 v{ACC+16*p+r}, v{g}, v{ACC+16*p+r}\nv_mul_f32 v{B+r}, v5, v{B+r}')
        rnd(ACC + 16 * p, 64); rnd(B, 64)
        for r in range(16): A(f'v_add_f32 v{B+r}, v{B+r}, v{ACC+16*p+r}')
        for j in range(8): A(f'v_cvt_pk_bf16_f32 v{72*0+64+8+j-8*0 if False else 72+j}, v{B+2*j}, v{B+2*j+1}')
        for g4 in range(4):
            A(f'buffer_store_dwordx2 {vr(72+2*g4,2)}, v3, s[20:23], s43 offen offset:{16*g4}')
        A(f's_add_u32 s43, s43, {32*1152}')
    A('L_k3_fin:')
    if prof:
        stamp(A, 3, prof)
        A('s_waitcnt vmcnt(0)')
        stamp(A, 4, prof)
        stamp_out(A, 2, 5, prof)
    A(f'L_{name}_end:\ns_endpgm')
    A.raw(kdesc(name, 400, 256))

def build(prof=False, kernels=('k1', 'k2', 'k3')):
    A = Asm()
    hdr = []
    if 'k1' in kernels: hdr.append(f'; @launch kernel=k1_kernel grid=(256,1,1) block=(512,1,1) lds={K1_LDS}')
    if 'k2' in kernels: hdr.append(f'; @launch kernel=k2_kernel grid=(256,1,1) block=(512,1,1) lds={K2_LDS}')
    if 'k3' in kernels: hdr.append(f'; @launch kernel=k3_kernel grid=(192,1,1) block=(256,1,1) lds={K3_LDS}')
    A.raw('\n'.join(hdr))
    A.raw('.amdgcn_target "amdgcn-amd-amdhsa--gfx950"\n.text')
    if 'k1' in kernels: gen_k1(A, prof)
    if 'k2' in kernels: gen_k2(A, prof)
    if 'k3' in kernels: gen_k3(A, prof)
    bad = A.check_cfg()
    for b in bad: print('HAZARD', b, file=sys.stderr)
    assert not bad
    return A.text()

if __name__ == '__main__':
    prof = '--prof' in sys.argv
    ks = [a for a in sys.argv[1:] if a in ('k1', 'k2', 'k3')] or ['k1', 'k2', 'k3']
    out = [a for a in sys.argv[1:] if a.endswith('.s')][0]
    open(out, 'w').write(build(prof, ks))
```
